```python
import torch

def _softmax(x, axis=-1):
    return torch.softmax(x, dim=axis)

def _gelu(x):
    return torch.nn.functional.gelu(x, approximate='tanh')

def _silu(x):
    return torch.nn.functional.silu(x)

def _sigmoid(x):
    return torch.sigmoid(x)

def _layernorm(x, axis=-1, eps=1e-05):
    m = x.mean(dim=axis, keepdim=True)
    v = x.var(dim=axis, keepdim=True, unbiased=False)
    return (x - m) / torch.sqrt(v + eps)

def _scatter_add(tgt, idx, src, axis=0):
    return tgt.clone().index_add_(axis, idx, src)

def _segment_sum(src, seg, n):
    out = torch.zeros((n,) + src.shape[1:], dtype=src.dtype)
    return out.index_add_(0, seg, src)

def _pad(x, pw):
    flat = tuple((v for pair in reversed(pw) for v in pair))
    return torch.nn.functional.pad(x, flat)
kernel_name = 'adaLN_cond__spectral_gfnet__glu_gated_reglu__prompt'

def setup_inputs():

    _w = lambda a: (lambda t: t.to(torch.bfloat16) if t.is_floating_point() else t)(torch.as_tensor(a))

    def _A_setup():
        B, S, D = (1, 2048, 640)
        Df = D // 2 + 1
        return {'x': _w((lambda *s: torch.randn(*s, dtype=torch.bfloat16) * 0.05)(B, S, D)), 'w_r': _w((lambda *s: torch.randn(*s, dtype=torch.bfloat16) * 1.6)(S, Df) * 0.02), 'w_i': _w((lambda *s: torch.randn(*s, dtype=torch.bfloat16) * 1.6)(S, Df) * 0.02)}
    _A_in = _A_setup()

    def _B_setup():
        B, S, D, F = (1, 2048, 640, 1536)
        return {'x': _w((lambda *s: torch.randn(*s, dtype=torch.bfloat16) * 0.05)(B, S, D)), 'W_gate': _w((lambda *s: torch.randn(*s, dtype=torch.bfloat16) * 0.4)(D, F) * (2.0 / D) ** 0.5), 'W_up': _w((lambda *s: torch.randn(*s, dtype=torch.bfloat16) * 0.4)(D, F) * (2.0 / D) ** 0.5), 'W_down': _w((lambda *s: torch.randn(*s, dtype=torch.bfloat16) * 0.4)(F, D) * (1.0 / F) ** 0.5)}
    _B_in = _B_setup()
    return {'A_x': _A_in['x'], 'A_w_r': _A_in['w_r'], 'A_w_i': _A_in['w_i'], 'B_x': _B_in['x'], 'B_W_gate': _B_in['W_gate'], 'B_W_up': _B_in['W_up'], 'B_W_down': _B_in['W_down'], 'c': _w((lambda *s: torch.randn(*s, dtype=torch.bfloat16) * 0.2)(1, 640) * 8.0), 'w_mod': _w((lambda *s: torch.randn(*s, dtype=torch.bfloat16) * 0.2)(640, 6 * 640) * 640 ** (-0.5) * 8.0)}

def reference(A_x, A_w_r, A_w_i, B_x, B_W_gate, B_W_up, B_W_down, c, w_mod):

    def _A_ref(x, w_r, w_i):
        B, S, D = x.shape
        X = (lambda x, axes=(-2, -1): torch.fft.rfft2(x.float(), dim=axes))(x, axes=(-2, -1))
        W = w_r + 1j * w_i
        X = X * W
        y = (lambda x, s, axes=(-2, -1): torch.fft.irfft2(x, s=s, dim=axes).to(torch.bfloat16))(X, (S, D), axes=(-2, -1))
        return y

    def _B_ref(x, W_gate, W_up, W_down):
        gate = torch.einsum('bsd,df->bsf', x, W_gate)
        up = torch.einsum('bsd,df->bsf', x, W_up)
        gate = gate * (lambda x, dt: x.to(dt))(gate > 0, gate.dtype)
        h = gate * up
        return torch.einsum('bsf,fd->bsd', h, W_down)
    x = A_x
    mod = (_silu(c) @ w_mod).reshape(c.shape[0], 6, 1, -1)
    sa, ca, ga, sb, cb, gb = (mod[:, 0].clone(), mod[:, 1].clone(), mod[:, 2].clone(), mod[:, 3].clone(), mod[:, 4].clone(), mod[:, 5].clone())
    h = _layernorm(x, axis=-1) * (1 + ca) + sa
    x = x + ga * _A_ref(h, A_w_r, A_w_i)
    h = _layernorm(x, axis=-1) * (1 + cb) + sb
    x = x + gb * _B_ref(h, B_W_gate, B_W_up, B_W_down)
    return x
```

```python
import re

REG_RE = re.compile(r'(?<![\w.])([vsa])(\d+)(?![\w\[])|(?<![\w.])([vsa])\[(\d+):(\d+)\]|\b(vcc|exec|m0|scc)\b')

def regs_of(op):
    out = []
    for m in REG_RE.finditer(op):
        if m.group(1):
            out.append((m.group(1), int(m.group(2))))
        elif m.group(3):
            out += [(m.group(3), i) for i in range(int(m.group(4)), int(m.group(5)) + 1)]
        else:
            out.append((m.group(6), 0))
    return out

def split_ops(s):
    ops, depth, cur = [], 0, ''
    for ch in s:
        if ch in '[(': depth += 1
        if ch in '])': depth -= 1
        if ch == ',' and depth == 0:
            ops.append(cur.strip()); cur = ''
        else:
            cur += ch
    if cur.strip(): ops.append(cur.strip())
    return ops

TRANS = ('v_exp_f32', 'v_log_f32', 'v_rcp_f32', 'v_rsq_f32', 'v_sqrt_f32', 'v_sin_f32', 'v_cos_f32', 'v_rcp_iflag_f32')

class Ins:
    __slots__ = ('text', 'mn', 'cls', 'rd', 'wr', 'passes', 'A', 'B', 'C', 'D', 'dpp', 'lds', 'wide', 'data', 'states', 'target', 'lanesel')
    def __init__(self, text):
        self.text = text
        t = text.split(';')[0].strip()
        parts = t.split(None, 1)
        mn = parts[0]; rest = parts[1] if len(parts) > 1 else ''
        self.mn = mn; self.rd = []; self.wr = []; self.passes = 0; self.dpp = False; self.lds = False
        self.wide = False; self.data = []; self.states = 1; self.target = None; self.lanesel = []
        self.A = self.B = self.C = self.D = []
        ops = split_ops(rest)
        R = [regs_of(o.split()[0] if (i == len(ops) - 1 and o.split()) else o) for i, o in enumerate(ops)]
        base = mn.replace('_e32', '').replace('_e64', '').replace('_dpp', '')
        if mn.startswith('v_mfma'):
            self.cls = 'mfma'; self.passes = 8 if '32x32x16' in mn else 4 if '16x16x32' in mn else None
            assert self.passes, mn
            self.D, self.A, self.B, self.C = R[0], R[1], R[2], R[3]
            self.wr = R[0]; self.rd = R[1] + R[2] + R[3]
        elif mn.startswith('v_'):
            self.cls = 'trans' if base in TRANS else 'dot' if base.startswith('v_dot') else 'valu'
            self.dpp = ('quad_perm' in rest or 'row_' in rest or '_dpp' in mn or 'wave_' in rest)
            if base.startswith('v_permlane') and 'swap' in base:
                self.wr = R[0] + R[1]; self.rd = R[0] + R[1]
            elif base.startswith('v_cmp'):
                self.wr = R[0]; self.rd = sum(R[1:], [])
                assert not base.startswith('v_cmpx')
            elif base in ('v_add_co_u32', 'v_sub_co_u32', 'v_addc_co_u32', 'v_subb_co_u32', 'v_mad_u64_u32'):
                self.wr = R[0] + R[1]; self.rd = sum(R[2:], [])
            elif base in ('v_nop',):
                pass
            else:
                self.wr = R[0]; self.rd = sum(R[1:], [])
                if base in ('v_fmac_f32', 'v_dot2c_f32_bf16', 'v_pk_fmac_f16', 'v_writelane_b32') or self.dpp:
                    self.rd = self.rd + R[0]
                if base == 'v_cndmask_b32' and len(ops) == 3: self.rd = self.rd + [('vcc', 0)]
                if base in ('v_readlane_b32', 'v_writelane_b32'): self.lanesel = R[2]
            if self.cls == 'dot':
                self.C = R[0] if base == 'v_dot2c_f32_bf16' else R[3]
                self.A = R[1] + R[2]
        elif mn.startswith('buffer_') or mn.startswith('global_'):
            toks = rest.split()
            self.lds = 'lds' in toks or mn.startswith('global_load_lds')
            allr = sum(R, [])
            if 'load' in mn and not self.lds:
                self.cls = 'vload'; self.wr = R[0]; self.rd = sum(R[1:], [])
                if 'd16' in mn: self.rd = self.rd + R[0]
            elif self.lds:
                self.cls = 'vdma'; self.rd = allr + [('m0', 0)]
            elif mn in ('buffer_inv', 'buffer_wbl2'):
                self.cls = 'vstore'
            else:
                self.cls = 'vstore'; self.rd = allr
                self.data = R[0] if mn.startswith('buffer_') else R[1]
                self.wide = ('x3' in mn or 'x4' in mn)
        elif mn.startswith('ds_'):
            if 'read' in mn or 'permute' in mn or 'swizzle' in mn:
                self.cls = 'dsread'; self.wr = R[0]; self.rd = sum(R[1:], [])
            else:
                self.cls = 'dswrite'; self.rd = sum(R, [])
        elif mn.startswith('s_load') or mn.startswith('s_buffer_load') or mn == 's_memtime' or mn == 's_memrealtime':
            self.cls = 'smem'; self.wr = R[0]; self.rd = sum(R[1:], [])
        elif mn == 's_nop':
            self.cls = 'nop'; self.states = int(rest, 0) + 1
        elif mn == 's_waitcnt':
            self.cls = 'wait'
        elif mn in ('s_barrier', 's_endpgm', 's_setprio', 's_sleep'):
            self.cls = 'misc'
        elif mn.startswith('s_cbranch') or mn == 's_branch':
            self.cls = 'branch'; self.target = rest.strip()
            if 'vcc' in mn: self.rd = [('vcc', 0)]
        elif mn.startswith('s_'):
            self.cls = 'salu'
            if mn.startswith('s_cmp') or mn.startswith('s_bitcmp'):
                self.rd = sum(R, [])
            else:
                self.wr = R[0]; self.rd = sum(R[1:], [])
                if 'saveexec' in mn: self.wr = self.wr + [('exec', 0)]
                if mn in ('s_addk_i32', 's_mulk_i32'): self.rd = self.rd + R[0]
        else:
            raise ValueError('unknown instruction ' + text)

class State:
    def __init__(self):
        self.ev = []
        self.vm = []
        self.lg = []
    def copy(self):
        s = State(); s.ev = [list(e) for e in self.ev]; s.vm = list(self.vm); s.lg = list(self.lg); return s

def merge(a, b):
    s = State()
    s.ev = [list(e) for e in a.ev] + [list(e) for e in b.ev]
    def mq(x, y, f):
        n = max(len(x), len(y)); out = []
        for i in range(n, 0, -1):
            ex = x[-i] if i <= len(x) else None; ey = y[-i] if i <= len(y) else None
            out.append(f(ex, ey))
        return out
    s.vm = mq(a.vm, b.vm, lambda p, q: (p or frozenset()) | (q or frozenset()))
    def fl(p, q):
        if p is None: return q
        if q is None: return p
        return ('smem' if 'smem' in (p[0], q[0]) else 'ds', p[1] | q[1])
    s.lg = mq(a.lg, b.lg, fl)
    return s

class Asm:
    def __init__(self):
        self.items = []
    def raw(self, text): self.items.append(('raw', text))
    def label(self, name): self.items.append(('label', name))
    def __call__(self, text):
        for line in text.split('\n'):
            line = line.strip()
            if not line or line.startswith(';'): continue
            if line.endswith(':'): self.label(line[:-1]); continue
            self.items.append(('ins', Ins(line)))
    def kernel_start(self): self.items.append(('reset', None))

    @staticmethod
    def need_states(st, ins):
        need = 0
        rd = set(ins.rd); wr = set(ins.wr); c = ins.cls
        isvalu = c in ('valu', 'trans', 'dot')
        isvmem = c in ('vload', 'vstore', 'vdma')
        isds = c in ('dsread', 'dswrite')
        base = ins.mn
        for kind, regs, age, extra in st.ev:
            r = 0
            if kind in ('valu_v', 'trans_v'):
                if regs & rd:
                    if c == 'mfma': r = 2
                    if ins.dpp or base.startswith('v_permlane'): r = max(r, 2)
                    if base.startswith('v_readlane') or base.startswith('v_readfirstlane'): r = max(r, 1)
                    if kind == 'trans_v' and c != 'trans': r = max(r, 1)
            elif kind == 'dot_v':
                if c == 'dot' and base == extra:
                    if regs & set(ins.A): r = 3
                elif regs & (rd | wr): r = 3
            elif kind == 'mfma_d':
                p, dt = extra
                big = 8 if p == 4 else 12
                if c == 'mfma':
                    if regs & (set(ins.A) | set(ins.B)): r = big
                    elif regs & set(ins.C):
                        if tuple(ins.C) == dt and ins.passes == p: r = 0
                        else: r = big - 2
                    elif regs & wr: r = big - 2
                elif regs & (rd | wr): r = big
            elif kind == 'mfma_c':
                if (isvalu or c in ('vload', 'dsread')) and regs & wr: r = 3 if extra == 4 else 7
            elif kind == 'valu_s':
                if regs & rd:
                    if isvalu: r = 2
                    if regs & set(ins.lanesel): r = 4
                    if isvmem: r = 5
                    if c in ('salu', 'smem', 'branch'): r = max(r, 1)
                    if c == 'branch': r = 5
            elif kind == 'store_data':
                if regs & wr: r = 2
            elif kind == 'm0':
                if c == 'vdma': r = 1
            need = max(need, r - age)
        return need

    def finalize(self):
        out = []
        st = State(); snaps = {}; seen_labels = set(); dead = False
        def advance(n):
            for e in st.ev: e[2] += n
            st.ev = [e for e in st.ev if e[2] < 24]
        for kind, it in self.items:
            if kind == 'raw': out.append(it); continue
            if kind == 'reset': st = State(); snaps = {}; dead = False; continue
            if kind == 'label':
                out.append(it + ':'); seen_labels.add(it)
                for s in snaps.pop(it, []):
                    st = s if dead else merge(st, s); dead = False
                continue
            ins = it
            touched = set(ins.rd) | set(ins.wr)
            vneed = None; lneed = None
            for i, d in enumerate(st.vm):
                if d & touched: vneed = len(st.vm) - 1 - i
            anys = any(k == 'smem' for k, _ in st.lg)
            for i, (k, d) in enumerate(st.lg):
                if d & touched: lneed = 0 if anys else len(st.lg) - 1 - i
            if vneed is not None or lneed is not None:
                w = 's_waitcnt'
                if vneed is not None:
                    vneed = min(vneed, 63); w += ' vmcnt(%d)' % vneed; st.vm = st.vm[len(st.vm) - vneed:] if vneed else []
                if lneed is not None:
                    lneed = min(lneed, 15); w += ' lgkmcnt(%d)' % lneed; st.lg = st.lg[len(st.lg) - lneed:] if lneed else []
                out.append('  ' + w); advance(1)
            n = self.need_states(st, ins)
            while n > 0:
                k = min(n, 16); out.append('  s_nop %d' % (k - 1)); advance(k); n -= k
            out.append('  ' + ins.text)
            if ins.cls == 'wait':
                m = re.search(r'vmcnt\((\d+)\)', ins.text)
                if m:
                    k = int(m.group(1)); st.vm = st.vm[max(0, len(st.vm) - k):] if k else []
                m = re.search(r'lgkmcnt\((\d+)\)', ins.text)
                if m:
                    k = int(m.group(1))
                    if k == 0: st.lg = []
                    elif not anys: st.lg = st.lg[max(0, len(st.lg) - k):]
            advance(ins.states)
            c = ins.cls
            vw = {r for r in ins.wr if r[0] in 'va' and len(r[0]) == 1}
            sw = {r for r in ins.wr if r not in vw}
            if c in ('valu', 'trans'):
                if vw: st.ev.append(['trans_v' if c == 'trans' else 'valu_v', vw, 0, None])
                if sw: st.ev.append(['valu_s', sw, 0, None])
            elif c == 'dot':
                st.ev.append(['dot_v', vw, 0, ins.mn])
            elif c == 'mfma':
                st.ev.append(['mfma_d', set(ins.D), 0, (ins.passes, tuple(ins.D))])
                if ins.C: st.ev.append(['mfma_c', set(ins.C), 0, ins.passes])
            elif c == 'vload': st.vm.append(frozenset(ins.wr))
            elif c == 'vdma': st.vm.append(frozenset())
            elif c == 'vstore':
                st.vm.append(frozenset())
                if ins.wide: st.ev.append(['store_data', set(ins.data), 0, None])
            elif c == 'dsread': st.lg.append(('ds', frozenset(ins.wr)))
            elif c == 'dswrite': st.lg.append(('ds', frozenset()))
            elif c == 'smem': st.lg.append(('smem', frozenset(ins.wr)))
            elif c == 'salu':
                if ('m0', 0) in sw: st.ev.append(['m0', sw, 0, None])
            elif c == 'branch':
                assert ins.target not in seen_labels, 'backward branch not supported: ' + ins.text
                snaps.setdefault(ins.target, []).append(st.copy())
                if ins.mn == 's_branch': dead = True
            if ins.mn == 's_endpgm': dead = True
            assert len(st.vm) <= 63 or True
        return '\n'.join(out) + '\n'

def kd(name, vgpr, sgpr=96, agpr=0):
    acc = (vgpr + 3) // 4 * 4
    return f""".p2align 6
.amdhsa_kernel {name}
  .amdhsa_next_free_vgpr {acc + agpr if agpr else vgpr}
  .amdhsa_next_free_sgpr {sgpr}
  .amdhsa_accum_offset {acc}
  .amdhsa_group_segment_fixed_size 0
  .amdhsa_kernarg_size 96
  .amdhsa_user_sgpr_count 2
  .amdhsa_user_sgpr_kernarg_segment_ptr 1
  .amdhsa_system_sgpr_workgroup_id_x 1
.end_amdhsa_kernel
"""
```

```python
from asmlib import *
from layout import *
import struct
def fl(x): return '0x%08x' % struct.unpack('<I', struct.pack('<f', x))[0]

def srd(a, d, lo, size):
    a(f"""s_mov_b32 s{d}, s{lo}
    s_mov_b32 s{d+1}, s{lo+1}
    s_mov_b32 s{d+2}, {size}
    s_mov_b32 s{d+3}, 0x20000""")

PTR = dict(x=8, wr=10, wi=12, wg=16, wu=18, wd=20, c=22, wmod=24, out=26, dbg=28, ws=30)
def load_ptrs(a):
    a("s_load_dwordx16 s[8:23], s[0:1], 0\ns_load_dwordx8 s[24:31], s[0:1], 64")

N_LN, N_MOD, N_TF, N_TE, N_TI, N_TM, N_PF = 160, 60, 50, 66, 50, 2, 16
B_MOD = N_LN; B_PF = B_MOD + N_MOD; B_TF = B_PF + N_PF; B_TE = B_TF + N_TF; B_TI = B_TE + N_TE; B_TM = B_TI + N_TI; K0_GRID = B_TM + N_TM
K0_LDS = 64 * 288

def gen_k0(a, code_end_label):
    a.raw(".globl k0_kernel\n.p2align 8\n.type k0_kernel,@function\nk0_kernel:")
    a.kernel_start()
    load_ptrs(a)
    a(f"""s_cmp_ge_u32 s2, {B_MOD}
    s_cbranch_scc1 K0_notln""")
    X = lambda u, k: 32 + 4 * (4 * k + u)
    a(f"""s_and_b32 s3, s2, 7
    s_lshr_b32 s4, s2, 3
    s_mul_i32 s5, s4, 52
    s_lshr_b32 s5, s5, 8
    s_mul_i32 s6, s5, 5
    s_sub_u32 s6, s4, s6              ; cs
    s_lshl_b32 s5, s5, 3
    s_add_u32 s5, s5, s3              ; b
    s_mul_i32 s7, s5, 1280
    v_lshrrev_b32 v1, 2, v0
    v_and_b32 v2, 3, v0
    v_mul_u32_u24 v3, 40960, v1
    v_lshlrev_b32 v4, 4, v2
    v_add_u32 v5, v3, v4              ; vaddrN
    v_sub_u32 v6, v3, v4
    v_add_u32 v6, 48, v6              ; vaddrM
    s_lshl_b32 s44, s6, 6""")
    for k in range(5):
        if k:
            a(f"""s_add_u32 s44, s44, 64
            s_cmp_ge_u32 s44, 320
            s_cselect_b32 s45, 320, 0
            s_sub_u32 s44, s44, s45""")
        a(f"""s_add_u32 s{50+k}, s7, s44
        s_sub_u32 s{55+k}, s7, s44
        s_add_u32 s{55+k}, s{55+k}, 256""")
    a("s_waitcnt lgkmcnt(0)")
    srd(a, 32, PTR['x'], S * D * 2)
    for k in range(5):
        a(f"""buffer_load_dwordx4 v[{X(0,k)}:{X(0,k)+3}], v5, s[32:35], s{50+k} offen
        buffer_load_dwordx4 v[{X(3,k)}:{X(3,k)+3}], v6, s[32:35], s{55+k} offen offset:320
        buffer_load_dwordx4 v[{X(1,k)}:{X(1,k)+3}], v5, s[32:35], s{50+k} offen offset:640
        buffer_load_dwordx4 v[{X(2,k)}:{X(2,k)+3}], v6, s[32:35], s{55+k} offen offset:960""")
    srd(a, 36, PTR['ws'], WS_USED)
    a(f"""v_lshrrev_b32 v7, 6, v0
    v_and_b32 v8, 15, v0
    v_lshl_add_u32 v9, v7, 4, v8       ; rho
    v_bfe_u32 v10, v0, 4, 2            ; g
    v_subrev_u32 v11, 32, v9
    v_cmp_lt_u32 vcc, 32, v9
    v_mov_b32 v12, 0
    v_mov_b32 v13, {fl(0.25)}
    v_cndmask_b32 v11, v9, v11, vcc    ; j1
    v_cndmask_b32 v12, v12, v13, vcc   ; off
    v_cvt_f32_u32 v11, v11
    v_cvt_f32_u32 v13, v10
    v_mul_f32 v11, {fl(1/64)}, v11     ; f
    v_mul_f32 v13, 4.0, v13
    v_fmac_f32 v12, v13, v11           ; base""")
    for ks in range(2):
        for e in range(8):
            io = 32 * ks + 16 * (e // 4) + e % 4
            if io: a(f"v_fmamk_f32 v{24+e}, v11, {fl(io)}, v12\nv_cos_f32 v{24+e}, v{24+e}")
            else: a(f"v_cos_f32 v{24+e}, v12")
        for e in range(4):
            a(f"v_cvt_pk_bf16_f32 v{16+4*ks+e}, v{24+2*e}, v{25+2*e}")
    a(f"""v_mul_u32_u24 v14, 288, v1
    v_lshl_add_u32 v14, v2, 3, v14
    v_bfe_u32 v15, v0, 2, 4
    v_mul_u32_u24 v15, 288, v15
    v_lshl_add_u32 v15, v2, 3, v15
    v_lshl_add_u32 v9, v7, 2, v10       ; 4w+g
    v_mul_u32_u24 v9, {4*40960}, v9
    v_lshl_add_u32 v9, v8, 4, v9
    s_lshl_b32 s44, s6, 8
    s_add_u32 s44, s44, s7
    s_add_u32 s44, s44, {G}
    s_add_u32 s45, s44, 40960
    s_add_u32 s46, s44, {2*40960}
    s_add_u32 s47, s44, {3*40960}
    s_mov_b32 s48, 0x3f803f80
    s_mov_b32 s49, 0xffff0000
    v_mov_b32 v24, 0
    v_mov_b32 v25, 0
    v_mov_b32 v26, 0
    v_mov_b32 v27, 0""")
    for k in range(5):
        for u in (0, 3, 1, 2):
            for j in range(4):
                r = X(u, k) + j
                a(f"v_dot2c_f32_bf16 v{24+(j&1)}, s48, v{r}\nv_dot2c_f32_bf16 v{26+(j&1)}, v{r}, v{r}")
    a(f"""v_add_f32 v24, v24, v25
    v_add_f32 v26, v26, v27
    v_add_f32_dpp v24, v24, v24 quad_perm:[1,0,3,2] row_mask:0xf bank_mask:0xf
    v_add_f32_dpp v26, v26, v26 quad_perm:[1,0,3,2] row_mask:0xf bank_mask:0xf
    v_add_f32_dpp v24, v24, v24 quad_perm:[2,3,0,1] row_mask:0xf bank_mask:0xf
    v_add_f32_dpp v26, v26, v26 quad_perm:[2,3,0,1] row_mask:0xf bank_mask:0xf
    v_mul_f32 v24, {fl(1/640)}, v24
    v_mul_f32 v26, {fl(1/640)}, v26
    v_fma_f32 v26, -v24, v24, v26
    v_max_f32 v26, 0, v26
    v_add_f32 v26, {fl(1e-5)}, v26
    v_rsq_f32 v26, v26
    v_mul_f32 v28, v24, v26
    v_mov_b32 v27, v26
    v_sub_f32 v28, 0, v28
    v_mov_b32 v29, v28""")
    V = lambda u, e: 48 + 8 * u + e
    for u in range(4):
        for j in range(4):
            a(f"v_lshlrev_b32 v{V(u,2*j)}, 16, v{X(u,0)+j}\nv_and_b32 v{V(u,2*j+1)}, s49, v{X(u,0)+j}")
        for j in range(4):
            a(f"v_pk_fma_f32 v[{V(u,2*j)}:{V(u,2*j+1)}], v[{V(u,2*j)}:{V(u,2*j+1)}], v[26:27], v[28:29]")
    for nu in range(8):
        u = nu % 4; e0 = nu // 4
        el = lambda e: V(u, e if u < 2 else 7 - e)
        t = 80 + 2 * nu
        a(f"""v_cvt_pk_bf16_f32 v{t}, v{el(e0)}, v{el(e0+2)}
        v_cvt_pk_bf16_f32 v{t+1}, v{el(e0+4)}, v{el(e0+6)}
        ds_write_b64 v14, v[{t}:{t+1}] offset:{nu*32}""")
    a("s_waitcnt lgkmcnt(0)\ns_barrier")
    Bf = lambda nu, ks: 32 + 8 * nu + 4 * ks
    Dt = lambda nu: 96 + 4 * nu
    for nu in range(8):
        for ks in range(2):
            for hf in range(2):
                a(f"ds_read_b64_tr_b16 v[{Bf(nu,ks)+2*hf}:{Bf(nu,ks)+2*hf+1}], v15 offset:{(32*ks+16*hf)*288+nu*32}")
    for nu in range(8):
        a(f"v_mfma_f32_16x16x32_bf16 v[{Dt(nu)}:{Dt(nu)+3}], v[16:19], v[{Bf(nu,0)}:{Bf(nu,0)+3}], 0")
        a(f"v_mfma_f32_16x16x32_bf16 v[{Dt(nu)}:{Dt(nu)+3}], v[20:23], v[{Bf(nu,1)}:{Bf(nu,1)+3}], v[{Dt(nu)}:{Dt(nu)+3}]")
    for i in range(4):
        for j in range(4):
            a(f"v_cvt_pk_bf16_f32 v{32+4*i+j}, v{Dt(2*j)+i}, v{Dt(2*j+1)+i}")
        a(f"buffer_store_dwordx4 v[{32+4*i}:{35+4*i}], v9, s[36:39], s{44+i} offen")
    a("s_endpgm")
    a(f"""K0_notln:
    s_cmp_ge_u32 s2, {B_PF}
    s_cbranch_scc1 K0_notmod
    s_sub_u32 s3, s2, {B_MOD}          ; nb
    v_lshlrev_b32 v1, 1, v0
    v_lshrrev_b32 v2, 3, v0            ; kr
    v_and_b32 v3, 7, v0                ; cc
    v_mul_u32_u24 v4, 153600, v2
    v_lshl_add_u32 v4, v3, 4, v4
    s_lshl_b32 s4, s3, 7
    s_waitcnt lgkmcnt(0)""")
    srd(a, 32, PTR['c'], 1280)
    srd(a, 40, PTR['wmod'], 640 * 3840 * 2)
    a("""buffer_load_ushort v8, v1, s[32:35], 0 offen
    buffer_load_ushort v9, v1, s[32:35], 0 offen offset:512
    buffer_load_ushort v10, v1, s[32:35], 0 offen offset:1024""")
    Wm = lambda i: 48 + 4 * i
    for i in range(20):
        a(f"buffer_load_dwordx4 v[{Wm(i)}:{Wm(i)+3}], v4, s[40:43], s4 offen")
        if i < 19: a("s_add_u32 s4, s4, 7680")
    srd(a, 36, PTR['ws'], WS_USED)
    a(f"""v_lshlrev_b32 v5, 3, v0
    v_mul_u32_u24 v6, 160, v2""")
    for j in range(3):
        r = 8 + j
        a(f"""v_lshlrev_b32 v{r}, 16, v{r}
        v_mul_f32 v11, {fl(-1.4426950408889634)}, v{r}
        v_exp_f32 v11, v11
        v_add_f32 v11, 1.0, v11
        v_rcp_f32 v11, v11
        v_mul_f32 v11, v{r}, v11
        v_cvt_pk_bf16_f32 v{12+2*j}, v11, 0
        v_lshlrev_b32 v{13+2*j}, 16, v{12+2*j}
        ds_write_b64 v5, v[{12+2*j}:{13+2*j}] offset:{2048*j}""")
    a("s_waitcnt lgkmcnt(0)\ns_barrier")
    for j in range(10):
        a(f"ds_read_b128 v[{8+4*j}:{11+4*j}], v6 offset:{16*j}")
    ACC = 128
    for j in range(8): a(f"v_mov_b32 v{ACC+j}, 0")
    for i in range(20):
        for j in range(4):
            a(f"v_dot2c_f32_bf16 v{ACC+2*j}, v{Wm(i)+j}, v{8+2*i}\nv_dot2c_f32_bf16 v{ACC+2*j+1}, v{Wm(i)+j}, v{9+2*i}")
    for j in range(4): a(f"v_permlane32_swap_b32 v{ACC+j}, v{ACC+j+4}")
    for j in range(4): a(f"v_add_f32 v{ACC+j}, v{ACC+j}, v{ACC+j+4}")
    for j in range(2): a(f"v_permlane16_swap_b32 v{ACC+j}, v{ACC+j+2}")
    for j in range(2): a(f"v_add_f32 v{ACC+j}, v{ACC+j}, v{ACC+j+2}")
    for j in range(2): a(f"v_add_f32_dpp v{ACC+j}, v{ACC+j}, v{ACC+j} row_ror:8 row_mask:0xf bank_mask:0xf")
    a(f"""v_and_b32 v8, 8, v0
    v_cmp_eq_u32 vcc, 0, v8
    v_lshlrev_b32 v9, 2, v0
    v_cndmask_b32 v8, v{ACC+1}, v{ACC}, vcc
    ds_write_b32 v9, v8 offset:8192
    s_waitcnt lgkmcnt(0)
    s_barrier
    v_readfirstlane_b32 s5, v0
    s_cmp_ge_u32 s5, 64
    s_cbranch_scc1 K0_end
    ds_read_b32 v10, v9 offset:8192
    ds_read_b32 v11, v9 offset:8448
    ds_read_b32 v12, v9 offset:8704
    ds_read_b32 v13, v9 offset:8960
    s_mul_i32 s5, s3, 205
    s_lshr_b32 s5, s5, 11
    s_mul_i32 s6, s5, 10
    s_sub_u32 s6, s3, s6
    s_lshl_b32 s6, s6, 6               ; d0
    s_cmp_eq_u32 s5, 1
    s_cselect_b32 s7, 1.0, 0
    s_cmp_eq_u32 s5, 4
    s_cselect_b32 s7, 1.0, s7
    s_mul_i32 s44, s5, 1280
    s_lshl_b32 s45, s44, 1
    v_bfe_u32 v14, v0, 5, 1
    v_bfe_u32 v15, v0, 4, 1
    v_bfe_u32 v16, v0, 3, 1
    v_lshl_add_u32 v16, v15, 1, v16
    v_lshl_add_u32 v16, v14, 2, v16
    v_lshl_add_u32 v16, v3, 3, v16
    v_add_u32 v16, s6, v16             ; d
    v_lshlrev_b32 v17, 2, v16          ; 4d
    v_sub_u32 v18, 1279, v17
    v_cmp_lt_u32 vcc, 159, v16
    v_subrev_u32 v19, 1279, v17
    v_cndmask_b32 v20, v17, v18, vcc
    v_cmp_lt_u32 vcc, 319, v16
    v_sub_u32 v18, 2558, v17
    v_cndmask_b32 v20, v20, v19, vcc
    v_cmp_lt_u32 vcc, 479, v16
    v_lshlrev_b32 v21, 1, v16          ; 2d
    v_cndmask_b32 v20, v20, v18, vcc   ; slot
    v_lshlrev_b32 v22, 1, v20
    v_lshlrev_b32 v23, 2, v20
    v_lshlrev_b32 v24, 15, v20
    v_and_b32 v24, 0x8000, v24
    v_add_f32 v10, v10, v11
    v_add_f32 v12, v12, v13
    v_add_f32 v10, v10, v12
    v_cvt_pk_bf16_f32 v10, v10, 0
    v_lshlrev_b32 v10, 16, v10
    v_add_f32 v10, s7, v10
    v_cvt_pk_bf16_f32 v10, v10, 0
    v_lshlrev_b32 v11, 16, v10
    v_xor_b32 v12, v24, v10
    v_mul_f32 v13, {fl(2.0/(S*D))}, v11
    s_add_u32 s46, s44, {MOD_NB}
    buffer_store_short v10, v21, s[36:39], s46 offen
    s_add_u32 s46, s45, {MOD_NF}
    buffer_store_dword v11, v17, s[36:39], s46 offen
    s_add_u32 s46, s44, {MOD_SB}
    buffer_store_short v10, v22, s[36:39], s46 offen
    s_add_u32 s46, s44, {MOD_SO}
    buffer_store_short v12, v22, s[36:39], s46 offen
    s_add_u32 s46, s45, {MOD_SF}
    buffer_store_dword v13, v23, s[36:39], s46 offen
    s_endpgm""")
    a(f"""K0_notmod:
    s_cmp_ge_u32 s2, {B_TF}
    s_cbranch_scc1 K0_tables""")
    a("s_getpc_b64 s[4:5]")
    a.raw("K0_pc:")
    a(f"""v_lshlrev_b32 v1, 7, v0
    v_mov_b32 v2, {code_end_label}-K0_pc-4
    v_min_u32 v4, v1, v2
    v_add_u32 v1, 32768, v1
    v_min_u32 v6, v1, v2
    v_mov_b32 v5, s5
    v_mov_b32 v7, s5
    v_add_co_u32 v4, vcc, s4, v4
    v_addc_co_u32 v5, vcc, 0, v5, vcc
    v_add_co_u32 v6, vcc, s4, v6
    v_addc_co_u32 v7, vcc, 0, v7, vcc
    global_load_dword v8, v[4:5], off
    global_load_dword v9, v[6:7], off
    s_waitcnt vmcnt(0)
    s_endpgm""")
    a(f"""K0_tables:
    s_cmp_ge_u32 s2, {K0_GRID}
    s_cbranch_scc1 K0_end
    v_lshrrev_b32 v1, 6, v0
    v_and_b32 v0, 63, v0
    v_readfirstlane_b32 s3, v1
    s_lshl_b32 s4, s2, 2
    s_add_u32 s3, s3, s4
    s_mov_b32 s50, 1.0                 ; amp
    v_lshlrev_b32 v31, 4, v0
    s_cmp_ge_u32 s2, {B_TE}
    s_cbranch_scc1 K0_te
    s_sub_u32 s3, s3, {4*B_TF}
    s_lshl_b32 s51, s3, 10
    s_add_u32 s51, s51, {TF}
    s_mul_i32 s4, s3, 52429
    s_lshr_b32 s4, s4, 18              ; fi/5
    s_mul_i32 s5, s4, 5
    s_sub_u32 s5, s3, s5               ; ks
    s_and_b32 s6, s4, 1                ; ty
    s_lshr_b32 s4, s4, 1               ; pi*10+st
    s_cmp_ge_u32 s4, 10
    s_cselect_b32 s7, 1, 0             ; pi
    s_cselect_b32 s44, 10, 0
    s_sub_u32 s4, s4, s44              ; st
    s_lshl_b32 s4, s4, 5
    s_add_u32 s4, s4, s7               ; 32st+pi
    s_mul_i32 s44, s6, 320
    s_mul_i32 s45, s6, {fl(-0.25)}     ; -0.25 or 0
    s_lshl_b32 s5, s5, 6
    s_add_u32 s5, s5, 1
    v_and_b32 v1, 15, v0
    v_lshl_add_u32 v1, v1, 1, s4       ; k
    v_mov_b32 v2, s44
    v_cmp_eq_u32 vcc, 0, v1
    v_lshrrev_b32 v3, 4, v0
    v_cndmask_b32 v1, v1, v2, vcc
    v_lshl_add_u32 v3, v3, 2, s5
    v_cvt_f32_u32 v1, v1
    v_cvt_f32_u32 v3, v3
    v_mul_f32 v1, {fl(1/1280)}, v1     ; f
    v_fma_f32 v8, v3, v1, s45          ; base
    v_mov_b32 v7, v8
    s_mov_b32 s52, 2.0
    s_mov_b32 s53, {fl(16)}
    s_mov_b32 s54, {fl(32)}
    s_branch K0_tail
    K0_te:
    s_cmp_ge_u32 s2, {B_TI}
    s_cbranch_scc1 K0_ti
    s_sub_u32 s3, s3, {4*B_TE}
    s_lshl_b32 s51, s3, 10
    s_add_u32 s51, s51, {TE}
    s_lshr_b32 s4, s3, 3               ; j1
    s_bitcmp1_b32 s3, 2                ; FI
    s_cselect_b32 s5, 0, s4            ; sA
    s_cselect_b32 s6, s4, 0            ; sB
    s_cselect_b32 s7, 0, 1
    s_and_b32 s44, s4, 31
    s_or_b32 s44, s44, s7
    s_cmp_eq_u32 s44, 0
    s_cselect_b32 s50, 0.5, 1.0
    s_bitcmp1_b32 s3, 1
    s_cselect_b32 s45, {fl(0.25)}, 0
    s_and_b32 s44, s3, 1
    s_lshl_b32 s44, s44, 4
    v_and_b32 v1, 15, v0
    v_add_u32 v1, s44, v1              ; x
    v_lshl_add_u32 v2, v1, 6, s5       ; 64x + sA
    v_mul_u32_u24 v4, s6, v1           ; x*sB
    v_lshrrev_b32 v3, 4, v0
    v_lshlrev_b32 v3, 2, v3
    v_mul_u32_u24 v3, v3, v2
    v_add_u32 v3, v3, v4
    v_cvt_f32_u32 v1, v2
    v_cvt_f32_u32 v3, v3
    v_mul_f32 v1, {fl(1/2048)}, v1     ; f
    v_mov_b32 v8, s45
    v_fmac_f32 v8, {fl(1/2048)}, v3
    v_mov_b32 v7, v8
    s_mov_b32 s52, 1.0
    s_mov_b32 s53, 2.0
    s_mov_b32 s54, {fl(16)}
    s_branch K0_tail
    K0_ti:
    s_cmp_ge_u32 s2, {B_TM}
    s_cbranch_scc1 K0_tm
    s_sub_u32 s3, s3, {4*B_TI}
    s_lshl_b32 s51, s3, 10
    s_add_u32 s51, s51, {TI}
    s_mul_i32 s4, s3, 52429
    s_lshr_b32 s4, s4, 19              ; fi/10
    s_mul_i32 s5, s4, 10
    s_sub_u32 s5, s3, s5               ; st
    s_and_b32 s6, s4, 1                ; ty
    s_bfe_u32 s7, s4, 0x10001          ; pi
    s_lshr_b32 s4, s4, 2               ; dt
    s_lshl_b32 s5, s5, 5
    s_add_u32 s5, s5, s7               ; 32st+pi
    s_mul_i32 s44, s6, 320
    s_mul_i32 s45, s6, {fl(-0.25)}
    s_lshl_b32 s4, s4, 6
    s_add_u32 s4, s4, 1
    v_and_b32 v1, 31, v0
    v_lshl_add_u32 v1, v1, 1, s4       ; 2t+1
    v_lshrrev_b32 v3, 5, v0
    v_lshl_add_u32 v3, v3, 4, s5       ; k0
    v_mov_b32 v2, s44
    v_cmp_eq_u32 vcc, 0, v3
    v_cvt_f32_u32 v1, v1
    v_cndmask_b32 v2, v3, v2, vcc
    v_cvt_f32_u32 v3, v3
    v_cvt_f32_u32 v2, v2
    v_mul_f32 v1, {fl(1/1280)}, v1
    v_fma_f32 v8, v3, v1, s45
    v_fma_f32 v7, v2, v1, s45
    s_mov_b32 s52, 2.0
    s_mov_b32 s53, 4.0
    s_mov_b32 s54, {fl(8)}
    s_branch K0_tail
    K0_tm:
    s_sub_u32 s3, s3, {4*B_TM}
    s_lshl_b32 s51, s3, 10
    s_add_u32 s51, s51, {TM}
    s_lshr_b32 s4, s3, 2
    s_lshl_b32 s4, s4, 5               ; 32Ta
    s_and_b32 s5, s3, 1
    s_lshl_b32 s5, s5, 4               ; 16*(ks&1)
    s_bitcmp1_b32 s3, 1
    s_cselect_b32 s45, {fl(0.25)}, 0
    s_cselect_b32 s44, {fl(32)}, 0
    v_and_b32 v1, 31, v0
    v_add_u32 v1, s4, v1
    v_lshrrev_b32 v3, 5, v0
    v_lshl_add_u32 v3, v3, 2, s5
    v_cmp_eq_u32 vcc, 0, v3
    v_cvt_f32_u32 v1, v1
    v_cvt_f32_u32 v3, v3
    v_mul_f32 v1, {fl(1/64)}, v1
    v_fma_f32 v8, v3, v1, s45
    v_mul_f32 v2, s44, v1
    v_cndmask_b32 v7, v8, v2, vcc
    s_mov_b32 s52, 1.0
    s_mov_b32 s53, 2.0
    s_mov_b32 s54, {fl(8)}
    K0_tail:
    v_fma_f32 v9, v1, s52, v8
    v_fma_f32 v10, v1, s53, v8
    v_fma_f32 v11, v1, s53, v9
    v_fma_f32 v12, v1, s54, v8
    v_fma_f32 v13, v1, s54, v9
    v_fma_f32 v14, v1, s54, v10
    v_fma_f32 v15, v1, s54, v11
    v_cos_f32 v8, v7""")
    for j in range(9, 16): a(f"v_cos_f32 v{j}, v{j}")
    for j in range(8, 16): a(f"v_mul_f32 v{j}, s50, v{j}")
    for j in range(4): a(f"v_cvt_pk_bf16_f32 v{16+j}, v{8+2*j}, v{9+2*j}")
    a("s_waitcnt lgkmcnt(0)")
    srd(a, 36, PTR['ws'], WS_USED)
    a("""buffer_store_dwordx4 v[16:19], v31, s[36:39], s51 offen
    K0_end:
    s_endpgm""")
    return dict(name='k0_kernel', grid=K0_GRID, block=256, lds=K0_LDS, vgpr=136)
```

```python
S, D, F = 2048, 640, 1536
def al(x, a=4096): return (x + a - 1) // a * a
off = 0
def take(n):
    global off
    o = off; off = al(off + n); return o
MOD_NB = take(3840 * 2)
MOD_NF = take(3840 * 4)
MOD_SB = take(3840 * 2)
MOD_SO = take(3840 * 2)
MOD_SF = take(3840 * 4)
TF = take(2 * 10 * 2 * 5 * 1024)
TE = take(33 * 8 * 1024)
TI = take(5 * 4 * 10 * 1024)
TM = take(8 * 1024)
G = take(64 * 32 * 1280)
PB = 2 * 10 * 33 * 128
P = take(32 * PB)
XP = take(64 * 80 * 512)
ST = take(40 * 2048 * 8)
WPN = 41 * 6 * 1024
WP = take(16 * WPN)
WD = take(8 * 48 * 5 * 1024)
HP = take(128 * 48 * 1024)
FL = take(128 * 128)
TS = take(5 * 512 * 16 * 64)
WS_USED = off
if __name__ == '__main__':
    for k, v in list(globals().items()):
        if k.isupper(): print(k, hex(v), v)
```

```python
import sys, importlib
from asmlib import *
import k0
HDR = open('adaLN_cond__spectral_gfnet__glu_gated_reglu__prompt.s.ref').read().split('; Override launch')[0]
def build(path, upto=99):
    a = Asm()
    ks = []
    ks.append(k0.gen_k0(a, 'CODE_END'))
    for i, m in enumerate(['k12', 'k3', 'k4', 'k5']):
        if i + 1 >= upto: break
        try: mod = importlib.import_module(m)
        except ModuleNotFoundError: break
        ks.append(mod.gen(a))
    a.raw('CODE_END:\n  s_endpgm')
    s = HDR
    for k in ks: s += f"; @launch kernel={k['name']} grid=({k['grid']},1,1) block=({k['block']},1,1) lds={k['lds']}\n"
    s += '.amdgcn_target "amdgcn-amd-amdhsa--gfx950"\n.text\n' + a.finalize()
    s += '.section .rodata,"a"\n'
    for k in ks: s += kd(k['name'], k['vgpr'], k.get('sgpr', 96), k.get('agpr', 0))
    open(path, 'w').write(s)
if __name__ == '__main__':
    build(sys.argv[1], int(sys.argv[2]) if len(sys.argv) > 2 else 99)
```

```python
import re, os

REG_RE = re.compile(r'(?<![\w.])([vsa])(\d+)(?![\w\[])|(?<![\w.])([vsa])\[(\d+):(\d+)\]|\b(vcc|exec|m0|scc)\b')

def regs_of(op):
    out = []
    for m in REG_RE.finditer(op):
        if m.group(1):
            out.append((m.group(1), int(m.group(2))))
        elif m.group(3):
            out += [(m.group(3), i) for i in range(int(m.group(4)), int(m.group(5)) + 1)]
        else:
            out.append((m.group(6), 0))
    return out

def split_ops(s):
    ops, depth, cur = [], 0, ''
    for ch in s:
        if ch in '[(': depth += 1
        if ch in '])': depth -= 1
        if ch == ',' and depth == 0:
            ops.append(cur.strip()); cur = ''
        else:
            cur += ch
    if cur.strip(): ops.append(cur.strip())
    return ops

TRANS = ('v_exp_f32', 'v_log_f32', 'v_rcp_f32', 'v_rsq_f32', 'v_sqrt_f32', 'v_sin_f32', 'v_cos_f32', 'v_rcp_iflag_f32')

class Ins:
    __slots__ = ('text', 'mn', 'cls', 'rd', 'wr', 'passes', 'A', 'B', 'C', 'D', 'dpp', 'lds', 'wide', 'data', 'states', 'target', 'lanesel')
    def __init__(self, text):
        self.text = text
        t = text.split(';')[0].strip()
        parts = t.split(None, 1)
        mn = parts[0]; rest = parts[1] if len(parts) > 1 else ''
        self.mn = mn; self.rd = []; self.wr = []; self.passes = 0; self.dpp = False; self.lds = False
        self.wide = False; self.data = []; self.states = 1; self.target = None; self.lanesel = []
        self.A = self.B = self.C = self.D = []
        ops = split_ops(rest)
        R = [regs_of(o.split()[0] if (i == len(ops) - 1 and o.split()) else o) for i, o in enumerate(ops)]
        base = mn.replace('_e32', '').replace('_e64', '').replace('_dpp', '')
        if mn.startswith('v_mfma'):
            self.cls = 'mfma'; self.passes = 8 if '32x32x16' in mn else 4 if '16x16x32' in mn else None
            assert self.passes, mn
            self.D, self.A, self.B, self.C = R[0], R[1], R[2], R[3]
            self.wr = R[0]; self.rd = R[1] + R[2] + R[3]
        elif mn.startswith('v_'):
            self.cls = 'trans' if base in TRANS else 'dot' if base.startswith('v_dot') else 'valu'
            self.dpp = ('quad_perm' in rest or 'row_' in rest or '_dpp' in mn or 'wave_' in rest)
            if base.startswith('v_permlane') and 'swap' in base:
                self.wr = R[0] + R[1]; self.rd = R[0] + R[1]
            elif base.startswith('v_cmp'):
                self.wr = R[0]; self.rd = sum(R[1:], [])
                assert not base.startswith('v_cmpx')
            elif base in ('v_add_co_u32', 'v_sub_co_u32', 'v_addc_co_u32', 'v_subb_co_u32', 'v_mad_u64_u32'):
                self.wr = R[0] + R[1]; self.rd = sum(R[2:], [])
            elif base in ('v_nop',):
                pass
            else:
                self.wr = R[0]; self.rd = sum(R[1:], [])
                if base in ('v_fmac_f32', 'v_dot2c_f32_bf16', 'v_pk_fmac_f16', 'v_writelane_b32') or self.dpp:
                    self.rd = self.rd + R[0]
                if base == 'v_cndmask_b32' and len(ops) == 3: self.rd = self.rd + [('vcc', 0)]
                if base in ('v_readlane_b32', 'v_writelane_b32'): self.lanesel = R[2]
            if self.cls == 'dot':
                self.C = R[0] if base == 'v_dot2c_f32_bf16' else R[3]
                self.A = R[1] + R[2]
        elif mn.startswith('buffer_') or mn.startswith('global_'):
            toks = rest.split()
            self.lds = 'lds' in toks or mn.startswith('global_load_lds')
            allr = sum(R, [])
            if 'load' in mn and not self.lds:
                self.cls = 'vload'; self.wr = R[0]; self.rd = sum(R[1:], [])
                if 'd16' in mn: self.rd = self.rd + R[0]
            elif self.lds:
                self.cls = 'vdma'; self.rd = allr + [('m0', 0)]
            elif mn in ('buffer_inv', 'buffer_wbl2'):
                self.cls = 'vstore'
            else:
                self.cls = 'vstore'; self.rd = allr
                self.data = R[0] if mn.startswith('buffer_') else R[1]
                self.wide = ('x3' in mn or 'x4' in mn)
        elif mn.startswith('ds_'):
            if 'read' in mn or 'permute' in mn or 'swizzle' in mn:
                self.cls = 'dsread'; self.wr = R[0]; self.rd = sum(R[1:], [])
            else:
                self.cls = 'dswrite'; self.rd = sum(R, [])
        elif mn.startswith('s_load') or mn.startswith('s_buffer_load') or mn == 's_memtime' or mn == 's_memrealtime':
            self.cls = 'smem'; self.wr = R[0]; self.rd = sum(R[1:], [])
        elif mn == 's_nop':
            self.cls = 'nop'; self.states = int(rest, 0) + 1
        elif mn == 's_waitcnt':
            self.cls = 'wait'
        elif mn in ('s_barrier', 's_endpgm', 's_setprio', 's_sleep'):
            self.cls = 'misc'
        elif mn.startswith('s_cbranch') or mn == 's_branch':
            self.cls = 'branch'; self.target = rest.strip()
            if 'vcc' in mn: self.rd = [('vcc', 0)]
        elif mn.startswith('s_'):
            self.cls = 'salu'
            if mn.startswith('s_cmp') or mn.startswith('s_bitcmp'):
                self.rd = sum(R, [])
            else:
                self.wr = R[0]; self.rd = sum(R[1:], [])
                if 'saveexec' in mn: self.wr = self.wr + [('exec', 0)]
                if mn in ('s_addk_i32', 's_mulk_i32'): self.rd = self.rd + R[0]
        else:
            raise ValueError('unknown instruction ' + text)

class State:
    def __init__(self):
        self.ev = []
        self.vm = []
        self.lg = []
    def copy(self):
        s = State(); s.ev = [list(e) for e in self.ev]; s.vm = list(self.vm); s.lg = list(self.lg); return s

def merge(a, b):
    s = State()
    s.ev = [list(e) for e in a.ev] + [list(e) for e in b.ev]
    def mq(x, y, f):
        n = max(len(x), len(y)); out = []
        for i in range(n, 0, -1):
            ex = x[-i] if i <= len(x) else None; ey = y[-i] if i <= len(y) else None
            out.append(f(ex, ey))
        return out
    s.vm = mq(a.vm, b.vm, lambda p, q: (p or frozenset()) | (q or frozenset()))
    def fl(p, q):
        if p is None: return q
        if q is None: return p
        return ('smem' if 'smem' in (p[0], q[0]) else 'ds', p[1] | q[1])
    s.lg = mq(a.lg, b.lg, fl)
    return s

class Asm:
    def __init__(self):
        self.items = []
    def raw(self, text): self.items.append(('raw', text))
    def label(self, name): self.items.append(('label', name))
    def __call__(self, text):
        for line in text.split('\n'):
            line = line.strip()
            if not line or line.startswith(';'): continue
            if line.endswith(':'): self.label(line[:-1]); continue
            if line.startswith('buffer_store') and ' sc1' not in line: line = line.split(';')[0].rstrip() + ' sc1'
            self.items.append(('ins', Ins(line)))
    def kernel_start(self): self.items.append(('reset', None))
    def loop_raw(self, text):
        self("s_waitcnt vmcnt(0) lgkmcnt(0)\ns_nop 7")
        self.raw(text)
        self("s_nop 7")
    dbg = False
    def sreg(self, i): return self.sb[i] if isinstance(self.sb, list) else self.sb + 2 * i
    def stamp(self, i):
        if self.dbg: self(f"{'s_memtime' if os.environ.get('DBGCLK') else 's_memrealtime'} s[{self.sreg(i)}:{self.sreg(i)+1}]")
    def flush(self, n, kidx, wave, ts, vt=(252, 253)):
        if not self.dbg: return
        self.stamp(n); n += 1
        self(f"s_mov_b64 exec, -1\ns_waitcnt lgkmcnt(0)\nv_mov_b32 v{vt[0]}, 0")
        for i in range(n): self(f"v_writelane_b32 v{vt[0]}, s{self.sreg(i)}, {i}")
        sb = self.sreg(0)
        self(f"s_getreg_b32 s{sb}, hwreg(HW_REG_XCC_ID)\nv_writelane_b32 v{vt[0]}, s{sb}, 15")
        self(f'''s_lshl_b32 s{sb}, s2, 4
        s_add_u32 s{sb}, s{sb}, s{wave}
        s_lshl_b32 s{sb}, s{sb}, 6
        s_add_u32 s{sb}, s{sb}, {ts + kidx * 512 * 16 * 64}
        v_mbcnt_lo_u32_b32 v{vt[1]}, -1, 0
        v_mbcnt_hi_u32_b32 v{vt[1]}, -1, v{vt[1]}
        v_cmp_gt_u32 vcc, 16, v{vt[1]}
        v_lshlrev_b32 v{vt[1]}, 2, v{vt[1]}
        s_and_b64 exec, exec, vcc
        buffer_store_dword v{vt[0]}, v{vt[1]}, s[36:39], s{sb} offen''')

    @staticmethod
    def need_states(st, ins):
        need = 0
        rd = set(ins.rd); wr = set(ins.wr); c = ins.cls
        isvalu = c in ('valu', 'trans', 'dot')
        isvmem = c in ('vload', 'vstore', 'vdma')
        isds = c in ('dsread', 'dswrite')
        base = ins.mn
        for kind, regs, age, extra in st.ev:
            r = 0
            if kind in ('valu_v', 'trans_v'):
                if regs & rd:
                    if c == 'mfma': r = 2
                    if ins.dpp or base.startswith('v_permlane'): r = max(r, 2)
                    if base.startswith('v_readlane') or base.startswith('v_readfirstlane'): r = max(r, 1)
                    if kind == 'trans_v' and c != 'trans': r = max(r, 1)
            elif kind == 'dot_v':
                if c == 'dot' and base == extra:
                    if regs & set(ins.A): r = 3
                elif regs & (rd | wr): r = 3
            elif kind == 'mfma_d':
                p, dt = extra
                big = 8 if p == 4 else 12
                if c == 'mfma':
                    if regs & (set(ins.A) | set(ins.B)): r = big
                    elif regs & set(ins.C):
                        if tuple(ins.C) == dt and ins.passes == p: r = 0
                        else: r = big - 2
                    elif regs & wr: r = big - 2
                elif regs & (rd | wr): r = big
            elif kind == 'mfma_c':
                if (isvalu or c in ('vload', 'dsread')) and regs & wr: r = 3 if extra == 4 else 7
            elif kind == 'valu_s':
                if regs & rd:
                    if isvalu: r = 2
                    if regs & set(ins.lanesel): r = 4
                    if isvmem: r = 5
                    if c in ('salu', 'smem', 'branch'): r = max(r, 1)
                    if c == 'branch': r = 5
            elif kind == 'store_data':
                if regs & wr: r = 2
            elif kind == 'm0':
                if c == 'vdma': r = 1
            need = max(need, r - age)
        return need

    def finalize(self):
        out = []
        st = State(); snaps = {}; seen_labels = set(); dead = False
        def advance(n):
            for e in st.ev: e[2] += n
            st.ev = [e for e in st.ev if e[2] < 24]
        for kind, it in self.items:
            if kind == 'raw': out.append(it); continue
            if kind == 'reset': st = State(); snaps = {}; dead = False; continue
            if kind == 'label':
                out.append(it + ':'); seen_labels.add(it)
                for s in snaps.pop(it, []):
                    st = s if dead else merge(st, s); dead = False
                continue
            ins = it
            touched = set(ins.rd) | set(ins.wr)
            vneed = None; lneed = None
            for i, d in enumerate(st.vm):
                if d & touched: vneed = len(st.vm) - 1 - i
            anys = any(k == 'smem' for k, _ in st.lg)
            for i, (k, d) in enumerate(st.lg):
                if d & touched: lneed = 0 if anys else len(st.lg) - 1 - i
            if vneed is not None or lneed is not None:
                w = 's_waitcnt'
                if vneed is not None:
                    vneed = min(vneed, 63); w += ' vmcnt(%d)' % vneed; st.vm = st.vm[len(st.vm) - vneed:] if vneed else []
                if lneed is not None:
                    lneed = min(lneed, 15); w += ' lgkmcnt(%d)' % lneed; st.lg = st.lg[len(st.lg) - lneed:] if lneed else []
                out.append('  ' + w); advance(1)
            n = self.need_states(st, ins)
            while n > 0:
                k = min(n, 16); out.append('  s_nop %d' % (k - 1)); advance(k); n -= k
            out.append('  ' + ins.text)
            if ins.cls == 'wait':
                m = re.search(r'vmcnt\((\d+)\)', ins.text)
                if m:
                    k = int(m.group(1)); st.vm = st.vm[max(0, len(st.vm) - k):] if k else []
                m = re.search(r'lgkmcnt\((\d+)\)', ins.text)
                if m:
                    k = int(m.group(1))
                    if k == 0: st.lg = []
                    elif not anys: st.lg = st.lg[max(0, len(st.lg) - k):]
            advance(ins.states)
            c = ins.cls
            vw = {r for r in ins.wr if r[0] in 'va' and len(r[0]) == 1}
            sw = {r for r in ins.wr if r not in vw}
            if c in ('valu', 'trans'):
                if vw: st.ev.append(['trans_v' if c == 'trans' else 'valu_v', vw, 0, None])
                if sw: st.ev.append(['valu_s', sw, 0, None])
            elif c == 'dot':
                st.ev.append(['dot_v', vw, 0, ins.mn])
            elif c == 'mfma':
                st.ev.append(['mfma_d', set(ins.D), 0, (ins.passes, tuple(ins.D))])
                if ins.C: st.ev.append(['mfma_c', set(ins.C), 0, ins.passes])
            elif c == 'vload': st.vm.append(frozenset(ins.wr))
            elif c == 'vdma': st.vm.append(frozenset())
            elif c == 'vstore':
                st.vm.append(frozenset())
                if ins.wide: st.ev.append(['store_data', set(ins.data), 0, None])
            elif c == 'dsread': st.lg.append(('ds', frozenset(ins.wr)))
            elif c == 'dswrite': st.lg.append(('ds', frozenset()))
            elif c == 'smem': st.lg.append(('smem', frozenset(ins.wr)))
            elif c == 'salu':
                if ('m0', 0) in sw: st.ev.append(['m0', sw, 0, None])
            elif c == 'branch':
                assert ins.target not in seen_labels, 'backward branch not supported: ' + ins.text
                snaps.setdefault(ins.target, []).append(st.copy())
                if ins.mn == 's_branch': dead = True
            if ins.mn == 's_endpgm': dead = True
            assert len(st.vm) <= 63 or True
        return '\n'.join(out) + '\n'

def kd(name, vgpr, sgpr=96, agpr=0):
    acc = (vgpr + 3) // 4 * 4
    return f""".p2align 6
.amdhsa_kernel {name}
  .amdhsa_next_free_vgpr {acc + agpr if agpr else vgpr}
  .amdhsa_next_free_sgpr {sgpr}
  .amdhsa_accum_offset {acc}
  .amdhsa_group_segment_fixed_size 0
  .amdhsa_kernarg_size 96
  .amdhsa_user_sgpr_count 2
  .amdhsa_user_sgpr_kernarg_segment_ptr 1
  .amdhsa_system_sgpr_workgroup_id_x 1
.end_amdhsa_kernel
"""
```

```python
from asmlib import *
from layout import *
import struct
def fl(x): return '0x%08x' % struct.unpack('<I', struct.pack('<f', x))[0]

def srd(a, d, lo, size):
    a(f"""s_mov_b32 s{d}, s{lo}
    s_mov_b32 s{d+1}, s{lo+1}
    s_mov_b32 s{d+2}, {size}
    s_mov_b32 s{d+3}, 0x20000""")

PTR = dict(x=8, wr=10, wi=12, wg=16, wu=18, wd=20, c=22, wmod=24, out=26, dbg=28, ws=30)
def load_ptrs(a):
    a("s_load_dwordx16 s[8:23], s[0:1], 0\ns_load_dwordx8 s[24:31], s[0:1], 64")

N_LN, N_MOD, N_TF, N_TE, N_TI, N_TM, N_PF = 160, 20, 50, 66, 50, 2, 0
B_MOD = N_LN; B_PF = B_MOD + N_MOD; B_TF = B_PF + N_PF; B_TE = B_TF + N_TF; B_TI = B_TE + N_TE; B_TM = B_TI + N_TI; K0_GRID = B_TM + N_TM
K0_LDS = 64 * 288

def mod_role(a, NW, end, kidx, wreg, vt):
    NL = 80 // NW; NC = 3 if NW == 4 else 2; T = 64 * NW
    a(f"""v_lshlrev_b32 v1, 1, v0
    v_lshrrev_b32 v2, 3, v0            ; kr
    v_and_b32 v3, 7, v0                ; cc
    v_mul_u32_u24 v4, {NL*7680}, v2
    v_lshl_add_u32 v4, v3, 4, v4
    s_lshl_b32 s4, s3, 7
    s_waitcnt lgkmcnt(0)""")
    a.stamp(1)
    srd(a, 32, PTR['c'], 1280)
    srd(a, 40, PTR['wmod'], 640 * 3840 * 2)
    for j in range(NC): a(f"buffer_load_ushort v{8+j}, v1, s[32:35], 0 offen offset:{2*T*j}")
    Wm = lambda i: 48 + 4 * i
    for i in range(NL):
        a(f"buffer_load_dwordx4 v[{Wm(i)}:{Wm(i)+3}], v4, s[40:43], s4 offen")
        if i < NL - 1: a("s_add_u32 s4, s4, 7680")
    srd(a, 36, PTR['ws'], WS_USED)
    a(f"""v_lshlrev_b32 v5, 3, v0
    v_mul_u32_u24 v6, {8*NL}, v2""")
    for j in range(NC):
        r = 8 + j
        a(f"""v_lshlrev_b32 v{r}, 16, v{r}
        v_mul_f32 v11, {fl(-1.4426950408889634)}, v{r}
        v_exp_f32 v11, v11
        v_add_f32 v11, 1.0, v11
        v_rcp_f32 v11, v11
        v_mul_f32 v11, v{r}, v11
        v_cvt_pk_bf16_f32 v{12+2*j}, v11, 0
        v_lshlrev_b32 v{13+2*j}, 16, v{12+2*j}
        ds_write_b64 v5, v[{12+2*j}:{13+2*j}] offset:{8*T*j}""")
    a("s_waitcnt lgkmcnt(0)\ns_barrier")
    for j in range(NL // 2):
        a(f"ds_read_b128 v[{8+4*j}:{11+4*j}], v6 offset:{16*j}")
    A = list(range(128, 136))
    for j in range(8): a(f"v_mov_b32 v{A[j]}, 0")
    for i in range(NL):
        for j in range(4):
            a(f"v_dot2c_f32_bf16 v{A[2*j]}, v{Wm(i)+j}, v{8+2*i}\nv_dot2c_f32_bf16 v{A[2*j+1]}, v{Wm(i)+j}, v{9+2*i}")
    a.stamp(2)
    for j in range(4): a(f"v_permlane32_swap_b32 v{A[j]}, v{A[j+4]}")
    for j in range(4): a(f"v_add_f32 v{A[j]}, v{A[j]}, v{A[j+4]}")
    for j in range(2): a(f"v_permlane16_swap_b32 v{A[j]}, v{A[j+2]}")
    for j in range(2): a(f"v_add_f32 v{A[j]}, v{A[j]}, v{A[j+2]}")
    for j in range(2): a(f"v_add_f32_dpp v{A[j]}, v{A[j]}, v{A[j]} row_ror:8 row_mask:0xf bank_mask:0xf")
    a(f"""v_and_b32 v8, 8, v0
    v_cmp_eq_u32 vcc, 0, v8
    v_lshlrev_b32 v9, 2, v0
    v_cndmask_b32 v8, v{A[1]}, v{A[0]}, vcc
    ds_write_b32 v9, v8 offset:8192
    s_waitcnt lgkmcnt(0)
    s_barrier
    v_readfirstlane_b32 s5, v0
    s_cmp_ge_u32 s5, 64
    s_cbranch_scc1 {end}""")
    for w in range(NW): a(f"ds_read_b32 v{32+w}, v9 offset:{8192+256*w}")
    a(f"""s_mul_i32 s5, s3, 205
    s_lshr_b32 s5, s5, 11
    s_mul_i32 s6, s5, 10
    s_sub_u32 s6, s3, s6
    s_lshl_b32 s6, s6, 6               ; d0
    s_cmp_eq_u32 s5, 1
    s_cselect_b32 s7, 1.0, 0
    s_cmp_eq_u32 s5, 4
    s_cselect_b32 s7, 1.0, s7
    s_mul_i32 s44, s5, 1280
    s_lshl_b32 s45, s44, 1
    v_bfe_u32 v14, v0, 5, 1
    v_bfe_u32 v15, v0, 4, 1
    v_bfe_u32 v16, v0, 3, 1
    v_lshl_add_u32 v16, v15, 1, v16
    v_lshl_add_u32 v16, v14, 2, v16
    v_lshl_add_u32 v16, v3, 3, v16
    v_add_u32 v16, s6, v16             ; d
    v_lshlrev_b32 v17, 2, v16          ; 4d
    v_sub_u32 v18, 1279, v17
    v_cmp_lt_u32 vcc, 159, v16
    v_subrev_u32 v19, 1279, v17
    v_cndmask_b32 v20, v17, v18, vcc
    v_cmp_lt_u32 vcc, 319, v16
    v_sub_u32 v18, 2558, v17
    v_cndmask_b32 v20, v20, v19, vcc
    v_cmp_lt_u32 vcc, 479, v16
    v_lshlrev_b32 v21, 1, v16          ; 2d
    v_cndmask_b32 v20, v20, v18, vcc   ; slot
    v_lshlrev_b32 v22, 1, v20
    v_lshlrev_b32 v23, 2, v20
    v_lshlrev_b32 v24, 15, v20
    v_and_b32 v24, 0x8000, v24""")
    n = NW
    while n > 1:
        for j in range(n // 2): a(f"v_add_f32 v{32+j}, v{32+j}, v{32+j+n//2}")
        n //= 2
    a(f"""v_cvt_pk_bf16_f32 v10, v32, 0
    v_lshlrev_b32 v10, 16, v10
    v_add_f32 v10, s7, v10
    v_cvt_pk_bf16_f32 v10, v10, 0
    v_lshlrev_b32 v11, 16, v10
    v_xor_b32 v12, v24, v10
    v_mul_f32 v13, {fl(2.0/(S*D))}, v11
    s_add_u32 s46, s44, {MOD_NB}
    buffer_store_short v10, v21, s[36:39], s46 offen
    s_add_u32 s46, s45, {MOD_NF}
    buffer_store_dword v11, v17, s[36:39], s46 offen
    s_add_u32 s46, s44, {MOD_SB}
    buffer_store_short v10, v22, s[36:39], s46 offen
    s_add_u32 s46, s44, {MOD_SO}
    buffer_store_short v12, v22, s[36:39], s46 offen
    s_add_u32 s46, s45, {MOD_SF}
    buffer_store_dword v13, v23, s[36:39], s46 offen""")
    a.stamp(3)
    if a.dbg: a("s_waitcnt vmcnt(0)")
    a.flush(4, kidx, wreg, TS, vt)
    a("s_endpgm")

def gen_k0(a, code_end_label):
    a.raw(".globl k0_kernel\n.p2align 8\n.type k0_kernel,@function\nk0_kernel:")
    a.kernel_start()
    a.sb = 64; a.stamp(0)
    load_ptrs(a)
    if a.dbg: a("v_lshrrev_b32 v1, 6, v0\nv_readfirstlane_b32 s63, v1")
    a(f"""s_cmp_ge_u32 s2, {B_MOD}
    s_cbranch_scc1 K0_notln""")
    X = lambda u, k: 32 + 4 * (4 * k + u)
    a(f"""s_and_b32 s3, s2, 7
    s_lshr_b32 s4, s2, 3
    s_mul_i32 s5, s4, 52
    s_lshr_b32 s5, s5, 8
    s_mul_i32 s6, s5, 5
    s_sub_u32 s6, s4, s6              ; cs
    s_lshl_b32 s5, s5, 3
    s_add_u32 s5, s5, s3              ; b
    s_mul_i32 s7, s5, 1280
    v_lshrrev_b32 v1, 2, v0
    v_and_b32 v2, 3, v0
    v_mul_u32_u24 v3, 40960, v1
    v_lshlrev_b32 v4, 4, v2
    v_add_u32 v5, v3, v4              ; vaddrN
    v_sub_u32 v6, v3, v4
    v_add_u32 v6, 48, v6              ; vaddrM
    s_lshl_b32 s44, s6, 6""")
    for k in range(5):
        if k:
            a(f"""s_add_u32 s44, s44, 64
            s_cmp_ge_u32 s44, 320
            s_cselect_b32 s45, 320, 0
            s_sub_u32 s44, s44, s45""")
        a(f"""s_add_u32 s{50+k}, s7, s44
        s_sub_u32 s{55+k}, s7, s44
        s_add_u32 s{55+k}, s{55+k}, 256""")
    a("s_waitcnt lgkmcnt(0)")
    a.stamp(1)
    srd(a, 32, PTR['x'], S * D * 2)
    for k in range(5):
        a(f"""buffer_load_dwordx4 v[{X(0,k)}:{X(0,k)+3}], v5, s[32:35], s{50+k} offen
        buffer_load_dwordx4 v[{X(3,k)}:{X(3,k)+3}], v6, s[32:35], s{55+k} offen offset:320
        buffer_load_dwordx4 v[{X(1,k)}:{X(1,k)+3}], v5, s[32:35], s{50+k} offen offset:640
        buffer_load_dwordx4 v[{X(2,k)}:{X(2,k)+3}], v6, s[32:35], s{55+k} offen offset:960""")
    a(f"""s_cmp_ge_u32 s4, 16
    s_cbranch_scc1 K0_pfcode
    s_lshr_b32 s44, s4, 2
    s_lshl_b32 s44, s44, 3
    s_add_u32 s44, s44, s3             ; j1
    s_sub_u32 s45, 64, s44
    s_cmp_eq_u32 s44, 0
    s_cselect_b32 s45, 32, s45
    s_bitcmp1_b32 s4, 1
    s_cselect_b32 s44, s45, s44
    s_mul_i32 s44, s44, 642
    s_bitcmp1_b32 s4, 0
    s_cselect_b32 s40, s{PTR['wi']}, s{PTR['wr']}
    s_cselect_b32 s41, s{PTR['wi']+1}, s{PTR['wr']+1}
    s_mov_b32 s42, {2048*642}
    s_mov_b32 s43, 0x20000
    v_lshrrev_b32 v7, 3, v0
    v_and_b32 v8, 7, v0
    v_mul_u32_u24 v7, {64*642}, v7
    v_min_u32 v8, 5, v8
    v_lshl_add_u32 v7, v8, 7, v7
    buffer_load_ushort v128, v7, s[40:43], s44 offen
    s_branch K0_pfdone
    K0_pfcode:
    s_getpc_b64 s[44:45]""")
    a.raw("K0_pc:")
    a(f"""s_sub_u32 s46, s4, 16
    s_lshl_b32 s46, s46, 15
    v_lshl_add_u32 v7, v0, 7, s46
    v_min_u32 v7, {code_end_label}-K0_pc-4, v7
    v_mov_b32 v9, s45
    v_add_co_u32 v8, vcc, s44, v7
    v_addc_co_u32 v9, vcc, 0, v9, vcc
    global_load_dword v128, v[8:9], off
    K0_pfdone:""")
    srd(a, 36, PTR['ws'], WS_USED)
    a(f"""v_lshrrev_b32 v7, 6, v0
    v_and_b32 v8, 15, v0
    v_lshl_add_u32 v9, v7, 4, v8       ; rho
    v_bfe_u32 v10, v0, 4, 2            ; g
    v_subrev_u32 v11, 32, v9
    v_cmp_lt_u32 vcc, 32, v9
    v_mov_b32 v12, 0
    v_mov_b32 v13, {fl(0.25)}
    v_cndmask_b32 v11, v9, v11, vcc    ; j1
    v_cndmask_b32 v12, v12, v13, vcc   ; off
    v_cvt_f32_u32 v11, v11
    v_cvt_f32_u32 v13, v10
    v_mul_f32 v11, {fl(1/64)}, v11     ; f
    v_mul_f32 v13, 4.0, v13
    v_fmac_f32 v12, v13, v11           ; base""")
    for ks in range(2):
        for e in range(8):
            io = 32 * ks + 16 * (e // 4) + e % 4
            if io: a(f"v_fmamk_f32 v{24+e}, v11, {fl(io)}, v12\nv_cos_f32 v{24+e}, v{24+e}")
            else: a(f"v_cos_f32 v{24+e}, v12")
        for e in range(4):
            a(f"v_cvt_pk_bf16_f32 v{16+4*ks+e}, v{24+2*e}, v{25+2*e}")
    a(f"""v_mul_u32_u24 v14, 288, v1
    v_lshl_add_u32 v14, v2, 3, v14
    v_bfe_u32 v15, v0, 2, 4
    v_mul_u32_u24 v15, 288, v15
    v_lshl_add_u32 v15, v2, 3, v15
    v_lshl_add_u32 v9, v7, 2, v10       ; 4w+g
    v_mul_u32_u24 v9, {4*40960}, v9
    v_lshl_add_u32 v9, v8, 4, v9
    s_lshl_b32 s44, s6, 8
    s_add_u32 s44, s44, s7
    s_add_u32 s44, s44, {G}
    s_add_u32 s45, s44, 40960
    s_add_u32 s46, s44, {2*40960}
    s_add_u32 s47, s44, {3*40960}
    s_mov_b32 s48, 0x3f803f80
    s_mov_b32 s49, 0xffff0000
    v_mov_b32 v24, 0
    v_mov_b32 v25, 0
    v_mov_b32 v26, 0
    v_mov_b32 v27, 0""")
    for k in range(5):
        for u in (0, 3, 1, 2):
            for j in range(4):
                r = X(u, k) + j
                a(f"v_dot2c_f32_bf16 v{24+(j&1)}, s48, v{r}\nv_dot2c_f32_bf16 v{26+(j&1)}, v{r}, v{r}")
    a.stamp(2)
    a(f"""v_add_f32 v24, v24, v25
    v_add_f32 v26, v26, v27
    v_add_f32_dpp v24, v24, v24 quad_perm:[1,0,3,2] row_mask:0xf bank_mask:0xf
    v_add_f32_dpp v26, v26, v26 quad_perm:[1,0,3,2] row_mask:0xf bank_mask:0xf
    v_add_f32_dpp v24, v24, v24 quad_perm:[2,3,0,1] row_mask:0xf bank_mask:0xf
    v_add_f32_dpp v26, v26, v26 quad_perm:[2,3,0,1] row_mask:0xf bank_mask:0xf
    v_mul_f32 v24, {fl(1/640)}, v24
    v_mul_f32 v26, {fl(1/640)}, v26
    v_fma_f32 v26, -v24, v24, v26
    v_max_f32 v26, 0, v26
    v_add_f32 v26, {fl(1e-5)}, v26
    v_rsq_f32 v26, v26
    v_mul_f32 v28, v24, v26
    v_mov_b32 v27, v26
    v_sub_f32 v28, 0, v28
    v_mov_b32 v29, v28""")
    V = lambda u, e: 48 + 8 * u + e
    for u in range(4):
        for j in range(4):
            a(f"v_lshlrev_b32 v{V(u,2*j)}, 16, v{X(u,0)+j}\nv_and_b32 v{V(u,2*j+1)}, s49, v{X(u,0)+j}")
        for j in range(4):
            a(f"v_pk_fma_f32 v[{V(u,2*j)}:{V(u,2*j+1)}], v[{V(u,2*j)}:{V(u,2*j+1)}], v[26:27], v[28:29]")
    for nu in range(8):
        u = nu % 4; e0 = nu // 4
        el = lambda e: V(u, e if u < 2 else 7 - e)
        t = 80 + 2 * nu
        a(f"""v_cvt_pk_bf16_f32 v{t}, v{el(e0)}, v{el(e0+2)}
        v_cvt_pk_bf16_f32 v{t+1}, v{el(e0+4)}, v{el(e0+6)}
        ds_write_b64 v14, v[{t}:{t+1}] offset:{nu*32}""")
    a("s_waitcnt lgkmcnt(0)\ns_barrier")
    a.stamp(3)
    Bf = lambda nu, ks: 32 + 8 * nu + 4 * ks
    Dt = lambda nu: 96 + 4 * nu
    for nu in range(8):
        for ks in range(2):
            for hf in range(2):
                a(f"ds_read_b64_tr_b16 v[{Bf(nu,ks)+2*hf}:{Bf(nu,ks)+2*hf+1}], v15 offset:{(32*ks+16*hf)*288+nu*32}")
    for nu in range(8):
        a(f"v_mfma_f32_16x16x32_bf16 v[{Dt(nu)}:{Dt(nu)+3}], v[16:19], v[{Bf(nu,0)}:{Bf(nu,0)+3}], 0")
        a(f"v_mfma_f32_16x16x32_bf16 v[{Dt(nu)}:{Dt(nu)+3}], v[20:23], v[{Bf(nu,1)}:{Bf(nu,1)+3}], v[{Dt(nu)}:{Dt(nu)+3}]")
    for i in range(4):
        for j in range(4):
            a(f"v_cvt_pk_bf16_f32 v{32+4*i+j}, v{Dt(2*j)+i}, v{Dt(2*j+1)+i}")
        a(f"buffer_store_dwordx4 v[{32+4*i}:{35+4*i}], v9, s[36:39], s{44+i} offen")
    a.stamp(4)
    if a.dbg: a("s_waitcnt vmcnt(0)")
    a.flush(5, 0, 63, TS, (130, 131))
    a("s_endpgm")
    a(f"""K0_notln:
    s_cmp_ge_u32 s2, {B_PF}
    s_cbranch_scc1 K0_tables
    s_sub_u32 s3, s2, {B_MOD}""")
    mod_role(a, 4, 'K0_end', 0, 63, (130, 131))
    a(f"""K0_tables:
    s_cmp_ge_u32 s2, {K0_GRID}
    s_cbranch_scc1 K0_end
    v_lshrrev_b32 v1, 6, v0
    v_and_b32 v0, 63, v0
    v_readfirstlane_b32 s3, v1
    s_lshl_b32 s4, s2, 2
    s_add_u32 s3, s3, s4
    s_mov_b32 s50, 1.0                 ; amp
    v_lshlrev_b32 v31, 4, v0
    s_cmp_ge_u32 s2, {B_TE}
    s_cbranch_scc1 K0_te
    s_sub_u32 s3, s3, {4*B_TF}
    s_lshl_b32 s51, s3, 10
    s_add_u32 s51, s51, {TF}
    s_mul_i32 s4, s3, 52429
    s_lshr_b32 s4, s4, 18              ; fi/5
    s_mul_i32 s5, s4, 5
    s_sub_u32 s5, s3, s5               ; ks
    s_and_b32 s6, s4, 1                ; ty
    s_lshr_b32 s4, s4, 1               ; pi*10+st
    s_cmp_ge_u32 s4, 10
    s_cselect_b32 s7, 1, 0             ; pi
    s_cselect_b32 s44, 10, 0
    s_sub_u32 s4, s4, s44              ; st
    s_lshl_b32 s4, s4, 5
    s_add_u32 s4, s4, s7               ; 32st+pi
    s_mul_i32 s44, s6, 320
    s_mul_i32 s45, s6, {fl(-0.25)}     ; -0.25 or 0
    s_lshl_b32 s5, s5, 6
    s_add_u32 s5, s5, 1
    v_and_b32 v1, 15, v0
    v_lshl_add_u32 v1, v1, 1, s4       ; k
    v_mov_b32 v2, s44
    v_cmp_eq_u32 vcc, 0, v1
    v_lshrrev_b32 v3, 4, v0
    v_cndmask_b32 v1, v1, v2, vcc
    v_lshl_add_u32 v3, v3, 2, s5
    v_cvt_f32_u32 v1, v1
    v_cvt_f32_u32 v3, v3
    v_mul_f32 v1, {fl(1/1280)}, v1     ; f
    v_fma_f32 v8, v3, v1, s45          ; base
    v_mov_b32 v7, v8
    s_mov_b32 s52, 2.0
    s_mov_b32 s53, {fl(16)}
    s_mov_b32 s54, {fl(32)}
    s_branch K0_tail
    K0_te:
    s_cmp_ge_u32 s2, {B_TI}
    s_cbranch_scc1 K0_ti
    s_sub_u32 s3, s3, {4*B_TE}
    s_lshl_b32 s51, s3, 10
    s_add_u32 s51, s51, {TE}
    s_lshr_b32 s4, s3, 3               ; j1
    s_bitcmp1_b32 s3, 2                ; FI
    s_cselect_b32 s5, 0, s4            ; sA
    s_cselect_b32 s6, s4, 0            ; sB
    s_cselect_b32 s7, 0, 1
    s_and_b32 s44, s4, 31
    s_or_b32 s44, s44, s7
    s_cmp_eq_u32 s44, 0
    s_cselect_b32 s50, 0.5, 1.0
    s_bitcmp1_b32 s3, 1
    s_cselect_b32 s45, {fl(0.25)}, 0
    s_and_b32 s44, s3, 1
    s_lshl_b32 s44, s44, 4
    v_and_b32 v1, 15, v0
    v_add_u32 v1, s44, v1              ; x
    v_lshl_add_u32 v2, v1, 6, s5       ; 64x + sA
    v_mul_u32_u24 v4, s6, v1           ; x*sB
    v_lshrrev_b32 v3, 4, v0
    v_lshlrev_b32 v3, 2, v3
    v_mul_u32_u24 v3, v3, v2
    v_add_u32 v3, v3, v4
    v_cvt_f32_u32 v1, v2
    v_cvt_f32_u32 v3, v3
    v_mul_f32 v1, {fl(1/2048)}, v1     ; f
    v_mov_b32 v8, s45
    v_fmac_f32 v8, {fl(1/2048)}, v3
    v_mov_b32 v7, v8
    s_mov_b32 s52, 1.0
    s_mov_b32 s53, 2.0
    s_mov_b32 s54, {fl(16)}
    s_branch K0_tail
    K0_ti:
    s_cmp_ge_u32 s2, {B_TM}
    s_cbranch_scc1 K0_tm
    s_sub_u32 s3, s3, {4*B_TI}
    s_lshl_b32 s51, s3, 10
    s_add_u32 s51, s51, {TI}
    s_mul_i32 s4, s3, 52429
    s_lshr_b32 s4, s4, 19              ; fi/10
    s_mul_i32 s5, s4, 10
    s_sub_u32 s5, s3, s5               ; st
    s_and_b32 s6, s4, 1                ; ty
    s_bfe_u32 s7, s4, 0x10001          ; pi
    s_lshr_b32 s4, s4, 2               ; dt
    s_lshl_b32 s5, s5, 5
    s_add_u32 s5, s5, s7               ; 32st+pi
    s_mul_i32 s44, s6, 320
    s_mul_i32 s45, s6, {fl(-0.25)}
    s_lshl_b32 s4, s4, 6
    s_add_u32 s4, s4, 1
    v_and_b32 v1, 31, v0
    v_lshl_add_u32 v1, v1, 1, s4       ; 2t+1
    v_lshrrev_b32 v3, 5, v0
    v_lshl_add_u32 v3, v3, 4, s5       ; k0
    v_mov_b32 v2, s44
    v_cmp_eq_u32 vcc, 0, v3
    v_cvt_f32_u32 v1, v1
    v_cndmask_b32 v2, v3, v2, vcc
    v_cvt_f32_u32 v3, v3
    v_cvt_f32_u32 v2, v2
    v_mul_f32 v1, {fl(1/1280)}, v1
    v_fma_f32 v8, v3, v1, s45
    v_fma_f32 v7, v2, v1, s45
    s_mov_b32 s52, 2.0
    s_mov_b32 s53, 4.0
    s_mov_b32 s54, {fl(8)}
    s_branch K0_tail
    K0_tm:
    s_sub_u32 s3, s3, {4*B_TM}
    s_lshl_b32 s51, s3, 10
    s_add_u32 s51, s51, {TM}
    s_lshr_b32 s4, s3, 2
    s_lshl_b32 s4, s4, 5               ; 32Ta
    s_and_b32 s5, s3, 1
    s_lshl_b32 s5, s5, 4               ; 16*(ks&1)
    s_bitcmp1_b32 s3, 1
    s_cselect_b32 s45, {fl(0.25)}, 0
    s_cselect_b32 s44, {fl(32)}, 0
    v_and_b32 v1, 31, v0
    v_add_u32 v1, s4, v1
    v_lshrrev_b32 v3, 5, v0
    v_lshl_add_u32 v3, v3, 2, s5
    v_cmp_eq_u32 vcc, 0, v3
    v_cvt_f32_u32 v1, v1
    v_cvt_f32_u32 v3, v3
    v_mul_f32 v1, {fl(1/64)}, v1
    v_fma_f32 v8, v3, v1, s45
    v_mul_f32 v2, s44, v1
    v_cndmask_b32 v7, v8, v2, vcc
    s_mov_b32 s52, 1.0
    s_mov_b32 s53, 2.0
    s_mov_b32 s54, {fl(8)}
    K0_tail:
    v_fma_f32 v9, v1, s52, v8
    v_fma_f32 v10, v1, s53, v8
    v_fma_f32 v11, v1, s53, v9
    v_fma_f32 v12, v1, s54, v8
    v_fma_f32 v13, v1, s54, v9
    v_fma_f32 v14, v1, s54, v10
    v_fma_f32 v15, v1, s54, v11
    v_cos_f32 v8, v7""")
    for j in range(9, 16): a(f"v_cos_f32 v{j}, v{j}")
    for j in range(8, 16): a(f"v_mul_f32 v{j}, s50, v{j}")
    for j in range(4): a(f"v_cvt_pk_bf16_f32 v{16+j}, v{8+2*j}, v{9+2*j}")
    a("s_waitcnt lgkmcnt(0)")
    srd(a, 36, PTR['ws'], WS_USED)
    a("buffer_store_dwordx4 v[16:19], v31, s[36:39], s51 offen")
    a.stamp(1)
    if a.dbg: a("s_waitcnt vmcnt(0)")
    a.flush(2, 0, 63, TS, (130, 131))
    a("K0_end:\ns_endpgm")
    return dict(name='k0_kernel', grid=K0_GRID, block=256, lds=K0_LDS, vgpr=136)
```

```python
import sys, importlib
from asmlib import *
import k0
HDR = open('adaLN_cond__spectral_gfnet__glu_gated_reglu__prompt.s.ref').read().split('; Override launch')[0]
def build(path, upto=99, dbg=False):
    a = Asm(); a.dbg = dbg
    ks = []
    ks.append(k0.gen_k0(a, 'CODE_END'))
    for i, m in enumerate(['k12', 'k3', 'k45']):
        if i + 1 >= upto: break
        try: mod = importlib.import_module(m)
        except ModuleNotFoundError: break
        ks.append(mod.gen(a))
    a.raw('CODE_END:\n  s_endpgm')
    s = HDR
    for k in ks: s += f"; @launch kernel={k['name']} grid=({k['grid']},1,1) block=({k['block']},1,1) lds={k['lds']}\n"
    s += '.amdgcn_target "amdgcn-amd-amdhsa--gfx950"\n.text\n' + a.finalize()
    s += '.section .rodata,"a"\n'
    for k in ks: s += kd(k['name'], k['vgpr'], k.get('sgpr', 96), k.get('agpr', 0))
    open(path, 'w').write(s)
if __name__ == '__main__':
    build(sys.argv[1], 99, len(sys.argv) > 2 and sys.argv[2] == 'dbg')
```

```python
from asmlib import *
from k0 import srd
base = open('t3.s').read()
def mk(tag, body):
    a = Asm(); a.raw(".globl pr_kernel\n.p2align 8\n.type pr_kernel,@function\npr_kernel:"); a.kernel_start()
    a("s_cmp_ge_u32 s2, 256\ns_cbranch_scc1 PR_end")
    body(a); a("PR_end:\ns_endpgm")
    ls = [l for l in base.split('\n') if l.startswith('; @launch')]
    s = base.replace(ls[-1], ls[-1] + '\n; @launch kernel=pr_kernel grid=(256,1,1) block=(256,1,1) lds=0', 1)
    s = s.replace('.section .rodata,"a"\n', a.finalize() + '.section .rodata,"a"\n' + kd('pr_kernel', 104, 48), 1)
    open(f'pr_{tag}.s', 'w').write(s)
def rw(off, n, store, ptr=88, size=0x10000000, per=81920):
    def f(a):
        a(f"s_load_dwordx2 s[30:31], s[0:1], {ptr}\nv_lshlrev_b32 v2, 4, v0\ns_mul_i32 s4, s2, {per}\ns_add_u32 s4, s4, {off}\nv_mov_b32 v4, 0\nv_mov_b32 v5, 0\nv_mov_b32 v6, 0\nv_mov_b32 v7, 0\ns_waitcnt lgkmcnt(0)")
        srd(a, 36, 30, size)
        for i in range(n):
            if store: a(f"buffer_store_dwordx4 v[4:7], v2, s[36:39], s4 offen\ns_add_u32 s4, s4, 4096")
            else: a(f"buffer_load_dwordx4 v[{8+4*i}:{11+4*i}], v2, s[36:39], s4 offen\ns_add_u32 s4, s4, 4096")
        a("s_waitcnt vmcnt(0)")
    return f
mk('empty', lambda a: None)
mk('rbx', rw(0, 3, False, 24, 2621440, 10240))
mk('wws', rw(64 << 20, 20, True))
mk('rws', rw(128 << 20, 20, False))
mk('rwe', rw(232 << 20, 20, False))
```
